```python
import torch

def _softmax(x, axis=-1):
    return torch.softmax(x, dim=axis)
def _gelu(x):
    return torch.nn.functional.gelu(x, approximate="tanh")
def _silu(x):
    return torch.nn.functional.silu(x)
def _sigmoid(x):
    return torch.sigmoid(x)
def _layernorm(x, axis=-1, eps=1e-5):
    m = x.mean(dim=axis, keepdim=True)
    v = x.var(dim=axis, keepdim=True, unbiased=False)
    return (x - m) / torch.sqrt(v + eps)
def _scatter_add(tgt, idx, src, axis=0):
    return tgt.clone().index_add_(axis, idx, src)
def _segment_sum(src, seg, n):
    out = torch.zeros((n,) + src.shape[1:], dtype=src.dtype)
    return out.index_add_(0, seg, src)
def _pad(x, pw):
    flat = tuple(v for pair in reversed(pw) for v in pair)
    return torch.nn.functional.pad(x, flat)

kernel_name = 'gated_mix__grouped_kv_mqa__compressed_kv_cla__prompt'

def setup_inputs():

    _w = (lambda a: (lambda t: t.to(torch.bfloat16) if t.is_floating_point() else t)(torch.as_tensor(a)))
    def _A_setup():
        B, S, D, H = 1, 2048, 512, 32
        Dh = D // H
        return {
            "x": _w((lambda *s: torch.randn(*s, dtype=torch.bfloat16) * 0.05)(B, S, D)),
            "wq": _w((lambda *s: torch.randn(*s, dtype=torch.bfloat16) * 1.6)(D, H * Dh)),
            "wk": _w((lambda *s: torch.randn(*s, dtype=torch.bfloat16) * 1.6)(D, Dh)),
            "wv": _w((lambda *s: torch.randn(*s, dtype=torch.bfloat16) * 0.8)(D, Dh)),
            "wo": _w((lambda *s: torch.randn(*s, dtype=torch.bfloat16) * 0.8)(H * Dh, D)),
        }
    _A_in = _A_setup()

    def _B_setup():
        B, H, Sq, Sk, D, M = 1, 32, 2048, 2048, 128, 512
        Dc = 4 * D
        return {
            "x": _w((lambda *s: torch.randn(*s, dtype=torch.bfloat16) * 0.05)(B, Sq, M)),
            "c_kv": _w((lambda *s: torch.randn(*s, dtype=torch.bfloat16) * 1.6)(B, Sk, Dc)),
            "w_q": _w((lambda *s: torch.randn(*s, dtype=torch.bfloat16) * 6.4)(M, H, D) * (M ** -0.5)),
            "w_uk": _w((lambda *s: torch.randn(*s, dtype=torch.bfloat16) * 6.4)(Dc, H, D) * (Dc ** -0.5)),
            "w_uv": _w((lambda *s: torch.randn(*s, dtype=torch.bfloat16) * 1.6)(Dc, H, D) * (Dc ** -0.5)),
            "w_o": _w((lambda *s: torch.randn(*s, dtype=torch.bfloat16) * 1.6)(H, D, M) * ((H * D) ** -0.5)),
        }
    _B_in = _B_setup()

    return {
        "A_x": _A_in["x"],
        "A_wq": _A_in["wq"],
        "A_wk": _A_in["wk"],
        "A_wv": _A_in["wv"],
        "A_wo": _A_in["wo"],
        "B_x": _B_in["x"],
        "B_c_kv": _B_in["c_kv"],
        "B_w_q": _B_in["w_q"],
        "B_w_uk": _B_in["w_uk"],
        "B_w_uv": _B_in["w_uv"],
        "B_w_o": _B_in["w_o"],
        "gate_w": _w((lambda *s: torch.randn(*s, dtype=torch.bfloat16) * 0.1)(512) * 16.0),
    }

def reference(A_x, A_wq, A_wk, A_wv, A_wo, B_x, B_c_kv, B_w_q, B_w_uk, B_w_uv, B_w_o, gate_w):
    def _A_ref(x, wq, wk, wv, wo):
        B, S, D = x.shape
        H = 32
        Dh = D // H
        q = (lambda x, *d: x.permute(*d))((x @ wq).reshape(B, S, H, Dh), 0, 2, 1, 3)
        k = x @ wk
        v = x @ wv
        scores = torch.einsum("bhqd,bkd->bhqk", q, k) * (Dh ** -0.5)
        p = _softmax(scores, axis=-1)
        o = torch.einsum("bhqk,bkd->bhqd", p, v)
        return (lambda x, *d: x.permute(*d))(o, 0, 2, 1, 3).reshape(B, S, H * Dh) @ wo

    def _B_ref(x, c_kv, w_q, w_uk, w_uv, w_o):
        B, Sq, M = x.shape[0], x.shape[1], x.shape[2]
        Sk = c_kv.shape[1]
        H, D = w_q.shape[1], w_q.shape[2]
        q = torch.einsum("bqm,mhd->bhqd", x, w_q)
        k = torch.einsum("bkc,chd->bhkd", c_kv, w_uk)
        v = torch.einsum("bkc,chd->bhkd", c_kv, w_uv)
        scores = torch.einsum("bhqd,bhkd->bhqk", q, k) * (D ** -0.5)
        off = Sk - Sq
        qi = torch.arange(Sq)[:, None]
        kj = torch.arange(Sk)[None, :]
        cmask = kj <= (qi + off)
        scores = torch.where(cmask[None, None], scores, -1e9)
        p = _softmax(scores, axis=-1)
        ctx = torch.einsum("bhqk,bhkd->bhqd", p, v)
        return torch.einsum("bhqd,hdm->bqm", ctx, w_o)

    x = A_x
    g = _sigmoid((x * gate_w).sum(-1, keepdims=True))
    a = _A_ref(x, A_wq, A_wk, A_wv, A_wo)
    b = _B_ref(x, B_c_kv, B_w_q, B_w_uk, B_w_uv, B_w_o)
    return g * a + (1 - g) * b
```

```python
import re

class Asm:
    def __init__(self):
        self.L = []
    def __call__(self, s):
        for line in s.split("\n"):
            line = line.strip()
            if line:
                self.L.append(line)
    def label(self, name):
        self.L.append(name + ":")
    def extend(self, lines):
        for l in lines:
            self(l)
    def text(self):
        out = []
        for l in self.L:
            if l.endswith(":") or l.startswith("."):
                out.append(l)
            else:
                out.append("    " + l)
        return "\n".join(out) + "\n"

def vr(b, n=1):
    return f"v{b}" if n == 1 else f"v[{b}:{b+n-1}]"
def ar(b, n=1):
    return f"a{b}" if n == 1 else f"a[{b}:{b+n-1}]"
def sr(b, n=1):
    return f"s{b}" if n == 1 else f"s[{b}:{b+n-1}]"

_REG = re.compile(r"^-?(?:abs\()?\|?([vas])(?:(\d+)|\[(\d+):(\d+)\])\|?\)?$")
def regs_of(tok):
    tok = tok.strip()
    if tok in ("vcc",): return {("s", 106), ("s", 107)}
    if tok == "vcc_lo": return {("s", 106)}
    if tok == "vcc_hi": return {("s", 107)}
    if tok == "exec": return {("s", 126), ("s", 127)}
    if tok == "m0": return {("s", 124)}
    m = _REG.match(tok)
    if not m: return set()
    k = m.group(1)
    if m.group(2) is not None:
        return {(k, int(m.group(2)))}
    return {(k, i) for i in range(int(m.group(3)), int(m.group(4)) + 1)}

TRANS = ("v_exp_f32", "v_rcp_f32", "v_log_f32", "v_rsq_f32", "v_sqrt_f32", "v_sin_f32", "v_cos_f32")

class Ins:
    __slots__ = ("text", "mn", "ops", "kind", "rd", "wr", "A", "B", "C", "passes", "ws", "store_data", "wide")
    def __init__(self, text):
        self.text = text
        t = text.split(";")[0].strip()
        parts = t.split(None, 1)
        self.mn = parts[0]
        rest = parts[1] if len(parts) > 1 else ""
        ops, cur, d = [], "", 0
        for ch in rest:
            if ch in "[(": d += 1
            if ch in "])": d -= 1
            if ch == "," and d == 0:
                ops.append(cur.strip()); cur = ""
            else:
                cur += ch
        if cur.strip(): ops.append(cur.strip())
        mods = []
        if ops:
            sp = ops[-1].split()
            ops[-1] = sp[0]; mods = sp[1:]
        self.ops = ops
        self.rd, self.wr = set(), set()
        self.A = self.B = self.C = set()
        self.passes = 0
        self.ws = 1
        self.store_data = set(); self.wide = False
        mn = self.mn
        R = regs_of
        if mn == "s_nop":
            self.kind = "nop"; self.ws = int(ops[0], 0) + 1
        elif mn.startswith("v_mfma"):
            self.kind = "mfma"
            self.wr = R(ops[0]); self.A = R(ops[1]); self.B = R(ops[2]); self.C = R(ops[3])
            self.rd = self.A | self.B | self.C
            self.passes = 8 if "32x32x16" in mn else 4
        elif mn.startswith("v_"):
            self.kind = "trans" if mn.split("_e")[0] in TRANS else "valu"
            if mn.startswith("v_permlane"):
                self.wr = R(ops[0]) | R(ops[1]); self.rd = set(self.wr)
            elif mn.startswith("v_cmp"):
                self.wr = R(ops[0])
                for o in ops[1:]: self.rd |= R(o)
            elif mn.startswith(("v_add_co", "v_sub_co", "v_addc_co", "v_subb_co")):
                self.wr = R(ops[0]) | R(ops[1])
                for o in ops[2:]: self.rd |= R(o)
            else:
                self.wr = R(ops[0])
                for o in ops[1:]: self.rd |= R(o)
                if mn.startswith(("v_fmac", "v_dot2c", "v_writelane")): self.rd |= self.wr
                if mn.startswith("v_cndmask") and len(ops) == 3: self.rd |= R("vcc")
        elif mn.startswith("ds_"):
            self.kind = "ds"
            if mn.startswith("ds_read") or mn.startswith("ds_bpermute") or mn.startswith("ds_swizzle"):
                self.wr = R(ops[0])
                for o in ops[1:]: self.rd |= R(o)
            else:
                for o in ops: self.rd |= R(o)
        elif mn.startswith("buffer_") or mn.startswith("global_"):
            self.kind = "vmem"
            if "lds" in mods or "_lds_" in mn:
                for o in ops: self.rd |= R(o)
                self.rd |= R("m0")
            elif "load" in mn:
                self.wr = R(ops[0])
                for o in ops[1:]: self.rd |= R(o)
            else:
                for o in ops: self.rd |= R(o)
                self.store_data = R(ops[0]) if mn.startswith("buffer_") else R(ops[1])
                self.wide = mn.endswith("x4") or mn.endswith("x3")
        elif mn.startswith("s_"):
            self.kind = "salu"
            if mn.startswith(("s_cmp", "s_cbranch", "s_branch", "s_waitcnt", "s_barrier", "s_endpgm", "s_setprio", "s_sleep")):
                for o in ops: self.rd |= R(o)
                if mn.startswith("s_cbranch_vcc"): self.rd |= R("vcc")
            else:
                if ops: self.wr = R(ops[0])
                for o in ops[1:]: self.rd |= R(o)
                if "saveexec" in mn: self.wr |= R("exec")
        else:
            self.kind = "other"

def fix_hazards(lines, prefix=()):
    lines = list(lines)
    for _ in range(200):
        allp = list(prefix) + lines
        idx = [i for i, l in enumerate(allp) if not (l.endswith(":") or l.startswith(".") or l.startswith(";") or l.startswith("@"))]
        pr = check_hazards(allp, raw=True)
        pr = [p for p in pr if idx[p[0]] >= len(prefix)]
        if not pr: return lines
        i, short = pr[0]
        short = max(s for (k, s) in pr if k == i)
        pos = idx[i] - len(prefix)
        lines.insert(pos, f"s_nop {short-1}")
    raise AssertionError("fix_hazards did not converge")

def check_hazards(lines, name="", raw=False):
    ins = [Ins(l) for l in lines if not l.endswith(":") and not l.startswith(".") and not l.startswith(";") and not l.startswith("@")]
    probs = []
    n = len(ins)
    for i, c in enumerate(ins):
        dist = 0
        j = i - 1
        while j >= 0 and dist < 24:
            p = ins[j]
            need = 0; why = ""
            isv = lambda x: x.kind in ("valu", "trans")
            vec = lambda s: {r for r in s if r[0] in "va"}
            sg = lambda s: {r for r in s if r[0] == "s"}
            if p.kind == "mfma":
                P = p.passes
                if c.kind == "mfma":
                    if p.wr & (c.A | c.B): need, why = (8 if P == 4 else 12), "mfma D->A/B"
                    elif p.wr & c.C:
                        if p.wr == c.C and p.passes == c.passes: need = 0
                        else: need, why = (6 if P == 4 else 10), "mfma D->C overlap"
                    if (p.wr & c.wr) and not (p.wr == c.C):
                        need2 = (6 if P == 4 else 10)
                        if need2 > need: need, why = need2, "mfma D->D waw"
                elif c.kind in ("valu", "trans", "ds", "vmem"):
                    if p.wr & (c.rd | c.wr): need, why = (8 if P == 4 else 12), "mfma D->valu/mem"
                    if isv(c) and (p.C & c.wr):
                        nd = 3 if P == 4 else 7
                        if nd > need: need, why = nd, "mfma C WAR"
            elif isv(p):
                if c.kind == "mfma" and (vec(p.wr) & c.rd): need, why = 2, "valu->mfma"
                if p.kind == "trans" and c.kind == "valu" and (p.wr & c.rd): need, why = max(need, 1), "trans->valu"
                if c.mn.startswith("v_permlane") and (vec(p.wr) & c.rd): need, why = max(need, 2), "valu->permlane"
                if c.mn.startswith(("v_readfirstlane", "v_readlane")) and (vec(p.wr) & c.rd): need, why = max(need, 1), "valu->readlane"
                if "dpp" in c.text or "row_" in c.text or "quad_perm" in c.text:
                    if vec(p.wr) & c.rd: need, why = max(need, 2), "valu->dpp"
                if sg(p.wr):
                    if isv(c) and (sg(p.wr) & c.rd): need, why = max(need, 2), "valu sgpr->valu"
                    if c.kind == "vmem" and (sg(p.wr) & c.rd): need, why = max(need, 5), "valu sgpr->vmem"
                    if c.kind == "mfma" and (("s", 126) in p.wr): need, why = max(need, 4), "exec->mfma"
            elif p.kind == "salu":
                if ("s", 124) in p.wr and c.kind == "vmem" and ("s", 124) in c.rd: need, why = 1, "m0->dma"
            elif p.kind == "vmem" and p.wide:
                if (p.store_data & c.wr): need, why = (2 if isv(c) else 1), "store data WAR"
            if need > dist:
                if raw: probs.append((i, need - dist))
                else: probs.append(f"{name}: [{i}] '{c.text}' needs {need} ws after [{j}] '{p.text}' ({why}), has {dist}")
            dist += p.ws
            j -= 1
    return probs

class F:
    def __init__(self, text, cost=1, lo=-1, hi=10**9):
        self.text, self.cost, self.lo, self.hi = text, cost, lo, hi

def weave(mf, streams, cap=6, first_gap=0):
    out = []
    heads = [0] * len(streams)
    n = len(mf)
    def fill(g, budget):
        while True:
            best = None
            for si, st in enumerate(streams):
                if heads[si] < len(st):
                    f = st[heads[si]]
                    if f.lo <= g:
                        hi = min(x.hi for x in st[heads[si]:heads[si] + 64])
                        if best is None or hi < best[0]:
                            best = (hi, si, f)
            if best is None: return
            hi, si, f = best
            if f.cost <= budget or budget == cap or hi <= g or g >= n - 1:
                out.append(f.text); heads[si] += 1; budget -= f.cost
            else:
                alt = None
                for sj, st in enumerate(streams):
                    if sj != si and heads[sj] < len(st):
                        f2 = st[heads[sj]]
                        if f2.lo <= g and f2.cost <= budget:
                            alt = (sj, f2); break
                if alt is None: return
                out.append(alt[1].text); heads[alt[0]] += 1; budget -= alt[1].cost
    if first_gap < 0:
        fill(-1, cap)
    for g in range(n):
        out.append(mf[g])
        fill(g, cap)
    for si, st in enumerate(streams):
        assert heads[si] == len(st), f"stream {si} not fully placed ({heads[si]}/{len(st)})"
    lines = []
    for o in out:
        lines += [x.strip() for x in o.split("\n") if x.strip()]
    return lines

class WaitState:
    def __init__(self):
        self.lg = []
        self.vm = []
    def copy(self):
        w = WaitState(); w.lg = list(self.lg); w.vm = list(self.vm); return w

def _aw(lines, st, forced=None):
    req = []
    for li, l in enumerate(lines):
        vm = lg = None
        if forced is not None:
            vm, lg = forced[li]
        def apply():
            if vm is not None and vm < len(st.vm): st.vm = st.vm[len(st.vm) - vm:] if vm else []
            if lg is not None and lg < len(st.lg): st.lg = st.lg[len(st.lg) - lg:] if lg else []
        if l.endswith(":") or l.startswith(".") or l.startswith(";"):
            req.append((None, None)); continue
        if l.startswith("@VM"):
            tags = l.split()[1:]
            idx = -1
            for k, (d, t) in enumerate(st.vm):
                if t in tags: idx = k
            if idx >= 0:
                n = min(len(st.vm) - 1 - idx, 63)
                vm = n if vm is None else min(vm, n)
            apply(); req.append((vm, lg)); continue
        if l.startswith("@LG0"):
            if st.lg: lg = 0
            apply(); req.append((vm, lg)); continue
        if l.startswith("@LGW"):
            want = regs_of(l.split()[1])
            idx = -1
            for k, d in enumerate(st.lg):
                if d & want: idx = k
            if idx >= 0:
                n = min(len(st.lg) - 1 - idx, 15)
                lg = n if lg is None else min(lg, n)
            apply(); req.append((vm, lg)); continue
        ins = Ins(l)
        if ins.mn == "s_waitcnt":
            apply()
            m = re.search(r"vmcnt\((\d+)\)", l)
            if m:
                n = int(m.group(1))
                if n < len(st.vm): st.vm = st.vm[len(st.vm) - n:] if n else []
            m = re.search(r"lgkmcnt\((\d+)\)", l)
            if m:
                n = int(m.group(1))
                if n < len(st.lg): st.lg = st.lg[len(st.lg) - n:] if n else []
            req.append((vm, lg)); continue
        touched = ins.rd | ins.wr
        idx = -1
        for k, d in enumerate(st.lg):
            if d & touched: idx = k
        if idx >= 0:
            n = min(len(st.lg) - 1 - idx, 15)
            lg = n if lg is None else min(lg, n)
        idx = -1
        for k, (d, t) in enumerate(st.vm):
            if d & touched: idx = k
        if idx >= 0:
            n = min(len(st.vm) - 1 - idx, 63)
            vm = n if vm is None else min(vm, n)
        apply()
        req.append((vm, lg))
        if ins.kind == "ds":
            st.lg.append(set(ins.wr))
        elif ins.kind == "vmem":
            m = re.search(r";#(\S+)", l)
            tag = m.group(1) if m else None
            st.vm.append((set() if tag == "pf" else set(ins.wr), tag))
    return req, st

def _render(lines, req):
    out = []
    for l, (vm, lg) in zip(lines, req):
        w = []
        if vm is not None: w.append(f"vmcnt({vm})")
        if lg is not None: w.append(f"lgkmcnt({lg})")
        if w: out.append("s_waitcnt " + " ".join(w))
        if not l.startswith("@"): out.append(l)
    return out

def autowait(lines, st=None):
    if st is None: st = WaitState()
    req, st = _aw(lines, st)
    return _render(lines, req), st

def autowait_loop(body, st, entry_states=()):
    forced = None
    for _ in range(8):
        s = st.copy()
        new = forced
        for it in range(4):
            new, s = _aw(body, s, new)
        if new == forced: break
        forced = new
    else:
        raise AssertionError("loop waits did not converge")
    return _render(body, forced), s
```

```python
from asmlib import *
import math, struct

MB = 1 << 20
WS_QB, WS_KB, WS_VB, WS_CTX = 0, 16 * MB, 32 * MB, 48 * MB
WS_QA = 64 * MB
WS_KA = 66 * MB
WS_VA = WS_KA + 65536
WS_G = WS_KA + 131072
WS_OA = 68 * MB
WS_BP = 72 * MB
WS_SIZE = 268435456

LOG2E = 1.4426950408889634
def f32bits(x):
    return struct.unpack("<I", struct.pack("<f", x))[0]

def srd(a, sd, ptr, nbytes):
    a(f"s_mov_b32 s{sd}, s{ptr}")
    a(f"s_and_b32 s{sd+1}, s{ptr+1}, 0xffff")
    a(f"s_mov_b32 s{sd+2}, {nbytes}")
    a(f"s_mov_b32 s{sd+3}, 0x20000")

def kernel_header(name):
    return f""".globl {name}
.p2align 8
.type {name},@function
{name}:
"""

def kernel_desc(name, vgpr, accum, sgpr=102):
    return f""".amdhsa_kernel {name}
  .amdhsa_next_free_vgpr {vgpr}
  .amdhsa_next_free_sgpr {sgpr}
  .amdhsa_accum_offset {accum}
  .amdhsa_group_segment_fixed_size 0
  .amdhsa_kernarg_size 120
  .amdhsa_user_sgpr_count 2
  .amdhsa_user_sgpr_kernarg_segment_ptr 1
  .amdhsa_system_sgpr_workgroup_id_x 1
.end_amdhsa_kernel
"""

import os
STAMP = os.environ.get("STAMP")
WS_DBG = 200 * MB
def stamp(i, base=None):
    if not STAMP: return []
    return [f"s_memtime s[{STAMP_T}:{STAMP_T+1}]", "s_waitcnt lgkmcnt(0)", f"s_mov_b32 s{STAMP_S+i}, s{STAMP_T}"]
STAMP_T, STAMP_S = 6, 8
def stamp_flush(srd_ws, wave_sgpr, kidx):
    if not STAMP: return []
    L = [f"s_memtime s[{STAMP_T}:{STAMP_T+1}]", "s_waitcnt lgkmcnt(0)", f"s_mov_b32 s{STAMP_S+7}, s{STAMP_T}",
         f"s_lshl_b32 s{STAMP_T}, s2, 2", f"s_add_u32 s{STAMP_T}, s{STAMP_T}, s{wave_sgpr}", f"s_lshl_b32 s{STAMP_T}, s{STAMP_T}, 5",
         f"s_add_u32 s{STAMP_T}, s{STAMP_T}, {WS_DBG + kidx * 65536}", "v_mov_b32 v0, 0"]
    for i in range(8):
        L += [f"v_mov_b32 v1, s{STAMP_S+i}", f"buffer_store_dword v1, v0, s[{srd_ws}:{srd_ws+3}], s{STAMP_T} offen offset:{4*i}", "s_nop 1"]
    return L
```

```python
import sys, importlib
sys.path.insert(0, "gen")
from common import *

HEADER = open("gated_mix__grouped_kv_mqa__compressed_kv_cla__prompt.s.ref").read().split("; Override launch")[0]

def generate(mods, path):
    launches, code, descs = [], [], []
    ok = True
    for m in mods:
        mod = importlib.import_module(m)
        a, probs = mod.build()
        for p in probs: print("HAZARD", p); ok = False
        launches.append(f"; @launch kernel={mod.NAME} grid=({mod.GRID},1,1) block=({mod.BLOCK},1,1) lds={mod.LDS_BYTES}")
        code.append(kernel_header(mod.NAME) + a.text())
        descs.append(kernel_desc(mod.NAME, mod.VGPR, mod.ACCUM))
        print(m, len(a.L), "lines")
    txt = HEADER + "\n".join(launches) + "\n"
    txt += '.amdgcn_target "amdgcn-amd-amdhsa--gfx950"\n.text\n' + "".join(code)
    txt += '.section .rodata,"a"\n' + "".join(".p2align 6\n" + d for d in descs)
    open(path, "w").write(txt)
    return ok

if __name__ == "__main__":
    out = sys.argv[1]
    generate(sys.argv[2:], out)
```

```python
from asmlib import *
import math, struct

MB = 1 << 20
WS_QB, WS_KB, WS_VB, WS_CTX = 0, 16 * MB, 32 * MB, 48 * MB
WS_QA = 64 * MB
WS_KA = 66 * MB
WS_VA = WS_KA + 65536
WS_G = WS_KA + 131072
WS_OA = 68 * MB
WS_BP = 72 * MB
WS_WT = 80 * MB
WS_SIZE = 268435456

LOG2E = 1.4426950408889634
def f32bits(x):
    return struct.unpack("<I", struct.pack("<f", x))[0]

def srd(a, sd, ptr, nbytes):
    a(f"s_mov_b32 s{sd}, s{ptr}")
    a(f"s_and_b32 s{sd+1}, s{ptr+1}, 0xffff")
    a(f"s_mov_b32 s{sd+2}, {nbytes}")
    a(f"s_mov_b32 s{sd+3}, 0x20000")

def kernel_header(name):
    return f""".globl {name}
.p2align 8
.type {name},@function
{name}:
"""

def kernel_desc(name, vgpr, accum, sgpr=102):
    return f""".amdhsa_kernel {name}
  .amdhsa_next_free_vgpr {vgpr}
  .amdhsa_next_free_sgpr {sgpr}
  .amdhsa_accum_offset {accum}
  .amdhsa_group_segment_fixed_size 0
  .amdhsa_kernarg_size 120
  .amdhsa_user_sgpr_count 2
  .amdhsa_user_sgpr_kernarg_segment_ptr 1
  .amdhsa_system_sgpr_workgroup_id_x 1
.end_amdhsa_kernel
"""

import os
STAMP = os.environ.get("STAMP")
WS_DBG = 200 * MB
def stamp(i, base=None):
    if not STAMP: return []
    if STAMP == "clk" and i not in (0,): return []
    L = [f"s_memtime s[{STAMP_T}:{STAMP_T+1}]", "s_waitcnt lgkmcnt(0)", f"s_mov_b32 s{STAMP_S+i}, s{STAMP_T}"]
    if STAMP == "clk":
        L += [f"s_memrealtime s[{STAMP_T}:{STAMP_T+1}]", "s_waitcnt lgkmcnt(0)", f"s_mov_b32 s{STAMP_S+1}, s{STAMP_T}"]
    return L
STAMP_T, STAMP_S = 6, 8
def stamp_flush(srd_ws, wave_sgpr, kidx):
    if not STAMP: return []
    L = []
    if STAMP == "clk":
        L += [f"s_memrealtime s[{STAMP_T}:{STAMP_T+1}]", "s_waitcnt lgkmcnt(0)", f"s_mov_b32 s{STAMP_S+2}, s{STAMP_T}"]
    L += [f"s_memtime s[{STAMP_T}:{STAMP_T+1}]", "s_waitcnt lgkmcnt(0)", f"s_mov_b32 s{STAMP_S+7}, s{STAMP_T}",
         f"s_lshl_b32 s{STAMP_T}, s2, 2", f"s_add_u32 s{STAMP_T}, s{STAMP_T}, s{wave_sgpr}", f"s_lshl_b32 s{STAMP_T}, s{STAMP_T}, 5",
         f"s_add_u32 s{STAMP_T}, s{STAMP_T}, {WS_DBG + kidx * 65536}", "v_mov_b32 v0, 0"]
    for i in range(8):
        L += [f"v_mov_b32 v1, s{STAMP_S+i}", f"buffer_store_dword v1, v0, s[{srd_ws}:{srd_ws+3}], s{STAMP_T} offen offset:{4*i}", "s_nop 1"]
    return L
```
